```python
import torch

def _softmax(x, axis=-1):
    return torch.softmax(x, dim=axis)
def _gelu(x):
    return torch.nn.functional.gelu(x, approximate="tanh")
def _silu(x):
    return torch.nn.functional.silu(x)
def _sigmoid(x):
    return torch.sigmoid(x)
def _layernorm(x, axis=-1, eps=1e-5):
    m = x.mean(dim=axis, keepdim=True)
    v = x.var(dim=axis, keepdim=True, unbiased=False)
    return (x - m) / torch.sqrt(v + eps)
def _scatter_add(tgt, idx, src, axis=0):
    return tgt.clone().index_add_(axis, idx, src)
def _segment_sum(src, seg, n):
    out = torch.zeros((n,) + src.shape[1:], dtype=src.dtype)
    return out.index_add_(0, seg, src)
def _pad(x, pw):
    flat = tuple(v for pair in reversed(pw) for v in pair)
    return torch.nn.functional.pad(x, flat)

kernel_name = 'standalone__gqa_block_cached__near_ridge'

def setup_inputs():

    _w = (lambda a: (lambda t: t.to(torch.bfloat16) if t.is_floating_point() else t)(torch.as_tensor(a)))
    B, Sq, D = 8, 144, 448
    Hq, Hkv, Sk, Dh = 16, 8, 1024, 256
    assert Hq % Hkv == 0, (Hq, Hkv)
    return {
        "x": _w((lambda *s: torch.randn(*s, dtype=torch.bfloat16) * 0.8)(B, Sq, D)),
        "k_cache": _w((lambda *s: torch.randn(*s, dtype=torch.bfloat16) * 0.8)(B, Hkv, Sk, Dh)),
        "v_cache": _w((lambda *s: torch.randn(*s, dtype=torch.bfloat16) * 0.05)(B, Hkv, Sk, Dh)),
        "wq": _w((lambda *s: torch.randn(*s, dtype=torch.bfloat16) * 0.8)(D, Hq * Dh) * (D ** -0.5)),
        "wo": _w((lambda *s: torch.randn(*s, dtype=torch.bfloat16) * 0.05)(Hq * Dh, D) * ((Hq * Dh) ** -0.5)),
    }

def reference(x, k_cache, v_cache, wq, wo):
    B, Sq, D = x.shape
    Hq, Dh = 16, 256
    Hkv = k_cache.shape[1]
    rep = Hq // Hkv
    q = (lambda x, *d: x.permute(*d))((x @ wq).reshape(B, Sq, Hq, Dh), 0, 2, 1, 3)
    k = (lambda x, n, axis: torch.repeat_interleave(x, n, dim=axis))(k_cache, rep, axis=1)
    v = (lambda x, n, axis: torch.repeat_interleave(x, n, dim=axis))(v_cache, rep, axis=1)
    scores = torch.einsum("bhqd,bhkd->bhqk", q, k) * (Dh ** -0.5)
    p = _softmax(scores, axis=-1)
    o = torch.einsum("bhqk,bhkd->bhqd", p, v)
    return (lambda x, *d: x.permute(*d))(o, 0, 2, 1, 3).reshape(B, Sq, Hq * Dh) @ wo
```

```python
import re

def regs(kind, base, n=1):
    return [f"{kind}{base+i}" for i in range(n)]

def rt(kind, base, n=1):
    return f"{kind}{base}" if n == 1 else f"{kind}[{base}:{base+n-1}]"

class Reg:
    def __init__(self, kind, base, n=1):
        self.kind, self.base, self.n = kind, base, n
    def __str__(self): return rt(self.kind, self.base, self.n)
    def list(self): return regs(self.kind, self.base, self.n)
    def __getitem__(self, i):
        if isinstance(i, slice):
            st = i.start or 0; en = i.stop if i.stop is not None else self.n
            return Reg(self.kind, self.base+st, en-st)
        assert 0 <= i < self.n, (i, self.n)
        return Reg(self.kind, self.base+i, 1)
    def sub(self, off, n):
        assert off+n <= self.n
        return Reg(self.kind, self.base+off, n)

def V(b, n=1): return Reg('v', b, n)
def A(b, n=1): return Reg('a', b, n)
def S(b, n=1): return Reg('s', b, n)

def _rl(x):
    if isinstance(x, Reg): return x.list()
    if isinstance(x, str) and x in ('vcc', 'exec', 'm0', 'scc'): return [x]
    return []

class I:
    __slots__ = ('text','kind','reads','writes','need','token','wait_vm','wait_lgkm','nops','tag','cost','srcc','pre','cmt')
    def __init__(self, text, kind, reads=(), writes=(), need=(), token=None, cost=1, srcc=()):
        self.text=text; self.kind=kind
        self.reads=set(); self.writes=set()
        for r in reads: self.reads.update(_rl(r))
        for w in writes: self.writes.update(_rl(w))
        self.need=list(need); self.token=token
        self.wait_vm=None; self.wait_lgkm=None; self.nops=0; self.tag=None; self.cost=cost
        self.srcc=set()
        for r in srcc: self.srcc.update(_rl(r))

def mfma16(d, a, b, c):
    return I(f"v_mfma_f32_16x16x32_bf16 {d}, {a}, {b}, {c}", 'mfma', [a,b,c], [d], srcc=[c])
def valu(op, d, *src, trans=False, extra_reads=(), extra_writes=()):
    txt = f"{op} {d}, " + ", ".join(str(s) for s in src)
    return I(txt, 'trans' if trans else 'valu', list(src)+list(extra_reads), [d]+list(extra_writes), cost=2 if trans else 1)
def vcmp(op, dst, a, b):
    return I(f"{op} {dst}, {a}, {b}", 'valu', [a,b], [dst])
def salu(op, d, *src, scc=True):
    txt = f"{op} {d}, " + ", ".join(str(s) for s in src) if d is not None else f"{op} " + ", ".join(str(s) for s in src)
    return I(txt, 'salu', list(src), ([d] if d is not None else []) + (['scc'] if scc else []))
def ds_read(op, d, addr, off=0):
    return I(f"{op} {d}, {addr}" + (f" offset:{off}" if off else ""), 'lds_rd', [addr], [d])
def ds_write(op, addr, s, off=0):
    return I(f"{op} {addr}, {s}" + (f" offset:{off}" if off else ""), 'lds_wr', [addr, s], [])
def buf_load(op, d, voff, srd, soff, off=0):
    return I(f"{op} {d}, {voff}, {srd}, {soff} offen" + (f" offset:{off}" if off else ""), 'vm_ld', [voff, srd, soff], [d])
def buf_dma(voff, srd, soff, off=0, token=None):
    return I(f"buffer_load_dwordx4 {voff}, {srd}, {soff} offen" + (f" offset:{off}" if off else "") + " lds", 'vm_dma', [voff, srd, soff, 'm0'], [], token=token)
def buf_store(op, s, voff, srd, soff, off=0):
    return I(f"{op} {s}, {voff}, {srd}, {soff} offen" + (f" offset:{off}" if off else ""), 'vm_st', [s, voff, srd, soff], [])
def raw(text, kind='salu', reads=(), writes=(), need=()):
    return I(text, kind, reads, writes, need=need)
def barrier(): return I("s_barrier", 'barrier')
def label(name): return I(f"{name}:", 'label', cost=0)
def waitall(vm=True, lgkm=True):
    i = I("", 'waitall', cost=0); i.wait_vm = 0 if vm else None; i.wait_lgkm = 0 if lgkm else None; return i

VM_KINDS = ('vm_ld','vm_dma','vm_st')
LG_KINDS = ('lds_rd','lds_wr','smem')

def insert_waits(trace):
    vm = []
    lg = []
    smem_out = False
    for ins in trace:
        if ins.kind == 'waitall':
            if ins.wait_vm is not None: vm = []
            if ins.wait_lgkm is not None: lg = []
            continue
        if ins.kind in ('label','branch'):
            continue
        touched = ins.reads | ins.writes
        needv = None
        for k,(rg,tok) in enumerate(vm):
            if (rg & touched) or (tok is not None and tok in ins.need):
                n = len(vm)-1-k
                needv = n if needv is None else min(needv, n)
        needl = None
        for k,(rg,tok) in enumerate(lg):
            if (rg & touched) or (tok is not None and tok in ins.need):
                n = len(lg)-1-k
                if tok == 'smem': n = 0
                needl = n if needl is None else min(needl, n)
        if needl is not None and any(t == 'smem' for _,t in lg): needl = 0
        if needl is not None: needl = min(needl, 15)
        if needv is not None:
            ins.wait_vm = needv if ins.wait_vm is None else min(ins.wait_vm, needv)
        if needl is not None:
            ins.wait_lgkm = needl if ins.wait_lgkm is None else min(ins.wait_lgkm, needl)
        if ins.wait_vm is not None:
            vm = vm[len(vm)-ins.wait_vm:] if ins.wait_vm < len(vm) else vm
            if ins.wait_vm == 0: vm = []
        if ins.wait_lgkm is not None:
            lg = lg[len(lg)-ins.wait_lgkm:] if ins.wait_lgkm < len(lg) else lg
            if ins.wait_lgkm == 0: lg = []
        if ins.kind in VM_KINDS:
            vm.append((set(ins.writes) if ins.kind == 'vm_ld' else set(), ins.token))
            assert len(vm) <= 63, "too many outstanding vm ops"
        elif ins.kind in LG_KINDS:
            lg.append((set(ins.writes) if ins.kind in ('lds_rd','smem') else set(), 'smem' if ins.kind == 'smem' else ins.token))

def _is_vgpr(r): return r[0] in 'va' and r not in ('vcc',)

def insert_nops(trace):
    hist = []
    for ins in trace:
        if ins.kind in ('label',): continue
        need = 0
        extra = 1 if (ins.wait_vm is not None or ins.wait_lgkm is not None) else 0
        if ins.kind == 'waitall':
            for h in hist: h[1] += extra
            continue
        for p, d in hist:
            d = d + extra
            req = 0
            pk, ck = p.kind, ins.kind
            valu_p = pk in ('valu','trans')
            valu_c = ck in ('valu','trans')
            if valu_p and ck == 'mfma' and (p.writes & ins.reads): req = max(req, 2)
            if pk == 'mfma':
                if ck == 'mfma':
                    if p.writes & (ins.reads - ins.srcc): req = max(req, 8)
                    if p.writes & ins.srcc:
                        if p.writes == ins.srcc: req = max(req, 0)
                        else: req = max(req, 6)
                elif ck in ('valu','trans','lds_rd','lds_wr','vm_ld','vm_st','vm_dma'):
                    if p.writes & (ins.reads | ins.writes): req = max(req, 8)
                    if valu_c and (p.srcc & ins.writes): req = max(req, 3)
                    if ck in ('lds_rd','vm_ld') and (p.srcc & ins.writes): req = max(req, 3)
            if valu_p:
                sw = {r for r in p.writes if r[0] == 's' or r == 'vcc'}
                if sw:
                    if valu_c and (sw & ins.reads): req = max(req, 2)
                    if ck in VM_KINDS and (sw & ins.reads): req = max(req, 5)
                    if ck == 'salu' and (sw & ins.reads): req = max(req, 3)
                if pk == 'trans' and ck in ('valu','mfma','lds_wr','vm_st') and (p.writes & ins.reads): req = max(req, 1 if ck=='valu' else 2)
                if 'readfirstlane' in ins.text or 'readlane' in ins.text:
                    if p.writes & ins.reads: req = max(req, 1)
                if 'permlane' in ins.text and (p.writes & (ins.reads|ins.writes)): req = max(req, 2)
                if 'exec' in p.writes and ck == 'mfma': req = max(req, 4)
            if pk == 'salu' and 'm0' in p.writes and ck == 'vm_dma': req = max(req, 1)
            if pk == 'salu' and 'exec' in p.writes and ck == 'mfma': req = max(req, 4)
            if pk == 'vm_st' and valu_c and ('x4' in p.text or 'x3' in p.text) and (p.reads & ins.writes): req = max(req, 2)
            if pk == 'lds_wr' and valu_c and ('b128' in p.text) and (p.reads & ins.writes): req = max(req, 1)
            if req > d: need = max(need, req - d)
        ins.nops = max(ins.nops, need)
        step = 1 + extra + ins.nops
        for h in hist: h[1] += step
        hist.append([ins, 0])
        hist = [h for h in hist if h[1] < 24]

def fold(trace):
    groups = {}
    for ins in trace:
        if ins.tag is not None:
            groups.setdefault((ins.tag[0], ins.tag[2]), []).append(ins)
    for key, lst in groups.items():
        t0 = lst[0].text
        for x in lst:
            assert x.text == t0, f"loop fold mismatch {key}: {t0!r} vs {x.text!r}"
        wv = [x.wait_vm for x in lst if x.wait_vm is not None]
        wl = [x.wait_lgkm for x in lst if x.wait_lgkm is not None]
        n = max(x.nops for x in lst)
        for x in lst:
            x.wait_vm = min(wv) if wv else None
            x.wait_lgkm = min(wl) if wl else None
            x.nops = n
    return [ins for ins in trace if ins.tag is None or ins.tag[1] == 0]

def emit(trace):
    out = []
    for ins in trace:
        w = []
        if ins.wait_vm is not None: w.append(f"vmcnt({ins.wait_vm})")
        if ins.wait_lgkm is not None: w.append(f"lgkmcnt({ins.wait_lgkm})")
        if w: out.append("  s_waitcnt " + " ".join(w))
        n = ins.nops
        while n > 0:
            k = min(n, 16); out.append(f"  s_nop {k-1}"); n -= k
        if ins.text:
            out.append(("" if ins.kind == 'label' else "  ") + ins.text)
    return out
```

```python
import sys
from asmlib import *

NT = 5
DEBUG = 0
for a in sys.argv[1:]:
    if a.startswith("debug="): DEBUG = int(a.split("=")[1])

P_BUF = [0, 20480]
MX_BUF = [40960, 42240]
WREG0 = 73728
WREG_SZ = 20480
LDS_TOTAL = 163840

SX, SWQ, SK, SV, SWO, SY = S(4,4), S(8,4), S(12,4), S(16,4), S(20,4), S(24,4)
sW, sQ, sH, sB = S(28), S(29), S(30), S(31)
sWREG = S(32)
sT0, sT1, sT2, sT3 = S(33), S(34), S(35), S(44)
sKROT = [S(36+i) for i in range(8)]
sVOFF = S(45)
sCNT = S(46)
sPEND = S(47)
sTHR = S(48)
sSC = S(49)
sVQ = [S(68+i) for i in range(4)]
sM0V = [S(72+i) for i in range(4)]
sKARG = S(52,16)

vTid, vLane, vG, vJ = V(0), V(1), V(2), V(3)
vKo = [V(4), V(5)]
vPw = V(6)
vPr = [V(7+i) for i in range(4)]
vVr = [V(11+i) for i in range(4)]
def Kf(kt, s): return V(16 + (kt*8+s)*4, 4)
SBUF = [80, 120]
def Sacc(buf, kt, nt): return V(SBUF[buf] + (kt*5+nt)*4, 4)
def VF(par, mt): return V(160 + par*16 + mt*4, 4)
def PF(i): return V(192 + (i % 4)*4, 4)
def NEGM(nt): return V(208 + nt*4, 4)
def L(nt): return V(228+nt)
def ALPHA(nt): return V(233+nt)
vMt = [V(238+i) for i in range(8)]
vVd = [V(246+i) for i in range(4)]
vMXw, vMXr = V(250), V(251)
vT = [V(252+i) for i in range(4)]
def Qf(nt, s): return A((nt*8+s)*4, 4)
def Oacc(mt, nt): return A(160 + (mt*5+nt)*4, 4)
def MXT(nt): return V(160 + nt*4, 4)

T = []
def E(x):
    if isinstance(x, list):
        for y in x: E(y)
    else:
        T.append(x)

def smul(d, a, imm): return salu("s_mul_i32", d, a, imm, scc=False)
def sadd(d, a, b): return salu("s_add_u32", d, a, b)
def smov(d, a): return salu("s_mov_b32", d, a, scc=False)

def make_srd(srd, ptr_lo, off_sreg, size):
    E(salu("s_add_u32", srd[0], ptr_lo, off_sreg))
    E(salu("s_addc_u32", srd[1], S(ptr_lo.base+1), 0))
    E(smov(srd[2], size))
    E(smov(srd[3], "0x00020000"))

def schedule(mfmas, streams, cap=2):
    out = []
    pos = [0]*len(streams)
    n = len(mfmas)
    for si, st in enumerate(streams):
        while pos[si] < len(st) and st[pos[si]][1] < 0:
            it = st[pos[si]]; pos[si] += 1
            out.extend(it[0] if isinstance(it[0], list) else [it[0]])
    for m in range(n):
        for si, st in enumerate(streams):
            last = -1
            for k in range(pos[si], len(st)):
                if len(st[k]) > 3 and st[k][3] <= m: last = k
            while pos[si] <= last:
                it = st[pos[si]]; pos[si] += 1
                out.extend(it[0] if isinstance(it[0], list) else [it[0]])
        out.append(mfmas[m])
        budget = cap
        while budget > 0:
            best = None
            for si, st in enumerate(streams):
                if pos[si] < len(st):
                    it = st[pos[si]]
                    if it[1] <= m:
                        if best is None or it[2] < best[0]:
                            best = (it[2], si)
            if best is None: break
            si = best[1]
            it = streams[si][pos[si]]; pos[si] += 1
            ins = it[0] if isinstance(it[0], list) else [it[0]]
            for x in ins:
                out.append(x); budget -= x.cost
    for si, st in enumerate(streams):
        while pos[si] < len(st):
            it = st[pos[si]]; pos[si] += 1
            ins = it[0] if isinstance(it[0], list) else [it[0]]
            out.extend(ins)
    return out

def setup():
    E(raw("s_cmp_ge_u32 s2, 256", writes=['scc']))
    E(raw("s_cbranch_scc1 L_END", kind='branch'))
    E(I("s_load_dwordx16 s[52:67], s[0:1], 0", 'smem', [], [sKARG]))
    E(valu("v_and_b32", vLane, 63, vTid))
    E(valu("v_lshrrev_b32", vT[0], 6, vTid))
    E(valu("v_lshrrev_b32", vG, 4, vLane))
    E(valu("v_and_b32", vJ, 15, vLane))
    E(I(f"v_readfirstlane_b32 {sW}, {vT[0]}", 'valu', [vT[0]], [sW]))
    E(salu("s_and_b32", sT0, S(2), 7))
    E(salu("s_lshr_b32", sT1, S(2), 3))
    E(salu("s_lshr_b32", sB, sT1, 2))
    E(salu("s_and_b32", sQ, sT1, 3))
    E(salu("s_lshr_b32", sT2, sQ, 1))
    E(salu("s_lshl_b32", sH, sT0, 1))
    E(sadd(sH, sH, sT2))
    E(salu("s_and_b32", sT2, sQ, 1))
    E(smul(sT3, sB, 144))
    E(smul(sT1, sT2, 72))
    E(sadd(sT3, sT3, sT1))
    E(smul(sT1, sT3, 896))
    make_srd(SX, S(52), sT1, 64512)
    E(smul(sT1, sH, 512))
    make_srd(SWQ, S(58), sT1, 0)
    E(salu("s_sub_u32", SWQ[2], 3670016, sT1))
    E(salu("s_lshl_b32", sT1, sB, 3))
    E(sadd(sT1, sT1, sT0))
    E(salu("s_lshl_b32", sT1, sT1, 19))
    make_srd(SK, S(54), sT1, 524288)
    make_srd(SV, S(56), sT1, 524288)
    E(smul(sT1, sH, 229376))
    make_srd(SWO, S(60), sT1, 229376)
    E(smul(sT1, sH, 1152))
    E(sadd(sT1, sT1, sT3))
    E(smul(sT1, sT1, 1792))
    make_srd(SY, S(66), sT1, 129024)
    E(smul(sWREG, sW, WREG_SZ))
    E(sadd(sWREG, sWREG, WREG0))
    E(salu("s_lshl_b32", sT1, sQ, 1))
    for s in range(8):
        E(sadd(sT2, sT1, s))
        E(salu("s_and_b32", sT2, sT2, 7))
        E(salu("s_lshl_b32", sKROT[s], sT2, 6))
    for i in range(4):
        E(sadd(sT2, sQ, i))
        E(salu("s_and_b32", sT2, sT2, 3))
        E(salu("s_lshl_b32", sVQ[i], sT2, 14))
        E(sadd(sM0V[i], sWREG, i*4096))
    E(smov(sTHR, "0x41000000"))
    E(smov(sSC, "0x3db8aa3b"))
    E(smov(sPEND, 0))
    E(valu("v_lshlrev_b32", vKo[0], 9, vJ))
    E(valu("v_lshlrev_b32", vT[0], 4, vG))
    E(valu("v_add_u32", vKo[0], vKo[0], vT[0]))
    E(salu("s_lshl_b32", sT1, sW, 14))
    E(valu("v_add_u32", vKo[0], sT1, vKo[0]))
    E(valu("v_add_u32", vKo[1], 8192, vKo[0]))

def k_load(kt, s):
    return buf_load("buffer_load_dwordx4", Kf(kt, s), vKo[kt], SK, sKROT[s])

SD = S(76, 4)
def dump_setup():
    E(salu("s_lshl_b32", sT1, S(2), 19))
    E(sadd(sT1, sT1, 64 << 20))
    make_srd(SD, S(66), sT1, 1 << 20)
    E(valu("v_lshlrev_b32", V(15), 4, vTid))
def dump(quads, base_idx):
    for i, qd in enumerate(quads):
        E(smov(sT2, (base_idx + i)*4096))
        E(buf_store("buffer_store_dwordx4", qd, V(15), SD, sT2))

def qproj():
    def QA(mt, nt): return V(80 + (mt*5+nt)*4, 4)
    def WF(par, mt): return V(160 + par*16 + mt*4, 4)
    def XF(par, nt): return V(192 + par*20 + nt*4, 4)
    xa = [V(232+i) for i in range(4)]
    xb = [V(236+i) for i in range(4)]
    wa = [V(240+i) for i in range(4)]
    vWd = V(244)
    vXd = V(245)
    for s in range(8):
        for kt in range(2):
            E(k_load(kt, s))
    E(smul(sT0, sW, 18))
    for i in range(18):
        E(sadd(sT1, sT0, i))
        E(salu("s_and_b32", sT2, sT1, 15))
        E(valu("v_xor_b32", vXd, sT2, vLane))
        E(valu("v_lshlrev_b32", vXd, 4, vXd))
        E(salu("s_lshl_b32", "m0", sT1, 10))
        E(smul(sT2, sT1, 896))
        E(buf_dma(vXd, SX, sT2, token="x"))
    E(valu("v_lshrrev_b32", vT[0], 3, vLane))
    E(valu("v_and_b32", vT[1], 6, vT[0]))
    E(valu("v_and_b32", vT[2], 7, vLane))
    E(valu("v_xor_b32", vT[1], vT[1], vT[2]))
    E(valu("v_lshlrev_b32", vT[1], 4, vT[1]))
    E(valu("v_lshlrev_b32", vT[0], 13, vT[0]))
    E(valu("v_add_u32", vWd, vT[0], vT[1]))
    E(salu("s_lshl_b32", sT1, sW, 7))
    E(valu("v_add_u32", vWd, sT1, vWd))
    def wq_dma(ks):
        r = []
        for p in range(4):
            r.append(salu("s_add_u32", "m0", sWREG, (ks & 3)*4096 + p*1024))
            r.append(smov(sT2, ks*262144 + p*65536))
            r.append(buf_dma(vWd, SWQ, sT2, token=f"wq{ks}"))
        return r
    for ks in range(4): E(wq_dma(ks))
    E(valu("v_lshrrev_b32", vT[0], 2, vJ))
    E(valu("v_and_b32", vT[1], 3, vJ))
    E(valu("v_lshlrev_b32", vT[2], 10, vG))
    E(valu("v_lshl_add_u32", vT[2], vT[0], 7, vT[2]))
    E(valu("v_and_b32", vT[3], 2, vT[0]))
    E(valu("v_lshl_add_u32", vT[2], vT[3], 4, vT[2]))
    E(valu("v_lshl_add_u32", vT[2], vT[1], 3, vT[2]))
    E(valu("v_add_u32", wa[0], sWREG, vT[2]))
    for mt in range(1, 4):
        E(valu("v_xor_b32", wa[mt], mt*32, wa[0]))
    E(valu("v_xor_b32", vT[0], vG, vJ))
    E(valu("v_lshlrev_b32", vT[0], 4, vT[0]))
    E(valu("v_lshl_add_u32", xa[0], vJ, 10, vT[0]))
    for e in range(1, 4):
        E(valu("v_xor_b32", xa[e], e*64, xa[0]))
    E(valu("v_min_u32", vT[1], 7, vJ))
    E(valu("v_xor_b32", vT[0], vG, vT[1]))
    E(valu("v_lshlrev_b32", vT[0], 4, vT[0]))
    E(valu("v_lshl_add_u32", xb[0], vT[1], 10, vT[0]))
    E(valu("v_add_u32", xb[0], 65536, xb[0]))
    for e in range(1, 4):
        E(valu("v_xor_b32", xb[e], e*64, xb[0]))
    E(raw("s_nop 0", need=["x"]))
    E(barrier())
    def frag_reads(ks):
        par = ks & 1
        r = []
        sl = (ks & 3)*4096
        for mt in range(4):
            i0 = ds_read("ds_read_b64_tr_b16", WF(par, mt).sub(0,2), wa[mt], sl); i0.need = [f"wq{ks}"]
            i1 = ds_read("ds_read_b64_tr_b16", WF(par, mt).sub(2,2), wa[mt^2], sl+512); i1.need = [f"wq{ks}"]
            r += [i0, i1]
        e, a = ks & 3, ks >> 2
        for nt in range(4):
            r.append(ds_read("ds_read_b128", XF(par, nt), xa[e], nt*16384 + a*256))
        r.append(ds_read("ds_read_b128", XF(par, 4), xb[e], a*256))
        return r
    E(frag_reads(0))
    for ks in range(14):
        par = ks & 1
        mf = []
        for nt in range(NT):
            for mt in range(4):
                c = QA(mt, nt) if ks > 0 else 0
                mf.append(mfma16(QA(mt, nt), WF(par, mt), XF(par, nt), c))
        st = []
        if ks + 1 < 14:
            st.append([[x, 0, i] for i, x in enumerate(frag_reads(ks+1))])
        if ks + 4 < 14:
            st.append([[x, 5, 10+i] for i, x in enumerate(wq_dma(ks+4))])
        E(schedule(mf, st))
    E(waitall(vm=False))
    E(barrier())
    qa = [V(232+i) for i in range(4)]
    E(valu("v_lshrrev_b32", vT[0], 1, vG))
    E(salu("s_lshl_b32", sT1, sW, 3))
    E(valu("v_add_u32", vT[0], sT1, vT[0]))
    E(valu("v_xor_b32", vT[0], vT[0], vJ))
    E(valu("v_lshlrev_b32", vT[0], 4, vT[0]))
    E(valu("v_lshl_add_u32", vT[0], vJ, 9, vT[0]))
    E(valu("v_and_b32", vT[1], 1, vG))
    E(valu("v_lshl_add_u32", qa[0], vT[1], 3, vT[0]))
    for mt in range(1, 4):
        E(valu("v_xor_b32", qa[mt], mt*32, qa[0]))
    for nt in range(NT):
        for mt in range(4):
            q = QA(mt, nt)
            for r in range(4):
                E(valu("v_mul_f32", q[r], sSC, q[r]))
            E(valu("v_cvt_pk_bf16_f32", q[0], q[0], q[1]))
            E(valu("v_cvt_pk_bf16_f32", q[1], q[2], q[3]))
            E(ds_write("ds_write_b64", qa[mt], q.sub(0,2), nt*8192))
    E(waitall(vm=False))
    E(barrier())
    vq0 = V(236)
    E(valu("v_xor_b32", vT[0], vG, vJ))
    E(valu("v_lshlrev_b32", vT[0], 4, vT[0]))
    E(valu("v_lshl_add_u32", vq0, vJ, 9, vT[0]))
    for s in range(8):
        E(valu("v_xor_b32", vT[s & 3], sKROT[s], vq0))
        for nt in range(NT):
            E(ds_read("ds_read_b128", Qf(nt, s), vT[s & 3], nt*8192))

def main_addr_setup():
    E(salu("s_lshl_b32", sT1, sW, 2))
    E(valu("v_add_u32", vT[0], sT1, vG))
    E(valu("v_xor_b32", vT[0], vT[0], vJ))
    E(valu("v_lshlrev_b32", vT[0], 4, vT[0]))
    E(valu("v_lshl_add_u32", vPw, vJ, 8, vT[0]))
    E(valu("v_xor_b32", vT[0], vG, vJ))
    E(valu("v_lshlrev_b32", vT[0], 4, vT[0]))
    E(valu("v_lshl_add_u32", vT[0], vJ, 8, vT[0]))
    for i in range(4):
        E(salu("s_lshr_b32", sT1, sVQ[i], 8))
        E(valu("v_xor_b32", vPr[i], sT1, vT[0]))
    E(valu("v_lshrrev_b32", vT[0], 2, vJ))
    E(valu("v_and_b32", vT[1], 3, vJ))
    E(valu("v_lshl_add_u32", vT[2], vG, 2, vT[0]))
    E(valu("v_and_b32", vT[3], 6, vT[2]))
    E(valu("v_lshlrev_b32", vT[2], 7, vT[2]))
    E(valu("v_lshl_add_u32", vT[2], vT[3], 4, vT[2]))
    E(valu("v_lshl_add_u32", vT[2], vT[1], 3, vT[2]))
    E(valu("v_add_u32", vVr[0], sWREG, vT[2]))
    for mt in range(1, 4):
        E(valu("v_xor_b32", vVr[mt], mt*32, vVr[0]))
    E(valu("v_lshrrev_b32", vT[0], 3, vLane))
    E(valu("v_and_b32", vT[1], 6, vT[0]))
    E(valu("v_and_b32", vT[2], 7, vLane))
    E(valu("v_xor_b32", vT[1], vT[1], vT[2]))
    E(valu("v_lshlrev_b32", vT[1], 4, vT[1]))
    E(valu("v_lshl_add_u32", vT[0], vT[0], 9, vT[1]))
    E(salu("s_lshl_b32", sT1, sW, 7))
    E(valu("v_add_u32", vVd[0], sT1, vT[0]))
    for p in range(1, 4):
        E(valu("v_add_u32", vVd[p], p*3072, vVd[0]))
    E(valu("v_lshlrev_b32", vT[0], 4, vLane))
    E(salu("s_lshl_b32", sT1, sW, 2))
    E(valu("v_add_u32", vMXw, sT1, vT[0]))
    E(valu("v_lshlrev_b32", vMXr, 4, vJ))
    for nt in range(NT):
        for r in range(4):
            E(valu("v_mov_b32", NEGM(nt)[r], 0))
        E(valu("v_mov_b32", L(nt), 0))
    for i in range(80):
        E(I(f"v_accvgpr_write_b32 a{160+i}, 0", 'valu', [], [A(160+i)]))
    E(smov(sVOFF, 0))

def v_dma(i, step_tag):
    r = [smov("m0", sM0V[i]), sadd(sT2, sVOFF, sVQ[i])]
    for p in range(4):
        r.append(buf_dma(vVd[p], SV, sT2, off=p*1024, token=f"v{step_tag}_{i}"))
    return r

def s_mfmas(buf):
    mf = []
    for s in range(8):
        for kt in range(2):
            for nt in range(NT):
                c = Sacc(buf, kt, nt) if s > 0 else NEGM(nt)
                mf.append(mfma16(Sacc(buf, kt, nt), Kf(kt, s), Qf(nt, s), c))
    return mf

def pv_mfmas():
    mf = []
    for i in range(4):
        for nt in range(NT):
            for mt in range(4):
                mf.append(mfma16(Oacc(mt, nt), VF(i & 1, mt), PF(i*5+nt), Oacc(mt, nt)))
    return mf

def max_items(buf, mxbuf):
    r = []
    for nt in range(NT):
        a, b = Sacc(buf, 0, nt), Sacc(buf, 1, nt)
        t = vMt[nt]
        r.append(valu("v_max3_f32", t, a[0], a[1], a[2]))
        r.append(valu("v_max3_f32", t, t, a[3], b[0]))
        r.append(valu("v_max3_f32", t, t, b[1], b[2]))
        r.append(valu("v_max_f32", t, t, b[3]))
    def swap(op, x, y): return I(f"{op} {x}, {y}", 'valu', [x, y], [x, y])
    t = vMt
    r.append(valu("v_mov_b32", t[5], t[4]))
    r.append(swap("v_permlane16_swap_b32", t[0], t[1]))
    r.append(swap("v_permlane16_swap_b32", t[2], t[3]))
    r.append(swap("v_permlane16_swap_b32", t[4], t[5]))
    r.append(valu("v_max_f32", t[0], t[0], t[1]))
    r.append(valu("v_max_f32", t[2], t[2], t[3]))
    r.append(valu("v_max_f32", t[4], t[4], t[5]))
    r.append(valu("v_mov_b32", t[5], t[4]))
    r.append(swap("v_permlane32_swap_b32", t[0], t[2]))
    r.append(swap("v_permlane32_swap_b32", t[4], t[5]))
    r.append(valu("v_max_f32", t[0], t[0], t[2]))
    r.append(valu("v_max_f32", t[4], t[4], t[5]))
    r.append(ds_write("ds_write_b32", vMXw, t[0], MX_BUF[mxbuf]))
    r.append(valu("v_and_b32", t[6], "0xff", vMXw))
    r.append(ds_write("ds_write_b32", t[6], t[4], MX_BUF[mxbuf] + 1024))
    return r

def softmax_items(buf, pbuf):
    res = []
    for nt in range(NT):
        a, b = Sacc(buf, 0, nt), Sacc(buf, 1, nt)
        e = [a[0],a[1],a[2],a[3],b[0],b[1],b[2],b[3]]
        r = []
        for k in range(8):
            r.append(valu("v_exp_f32", e[k], e[k], trans=True))
            if k >= 1:
                r.append(valu("v_add_f32", L(nt), L(nt), e[k-1]))
        r.append(valu("v_cvt_pk_bf16_f32", a[0], a[0], a[1]))
        r.append(valu("v_add_f32", L(nt), L(nt), e[7]))
        r.append(valu("v_cvt_pk_bf16_f32", a[1], a[2], a[3]))
        r.append(valu("v_cvt_pk_bf16_f32", a[2], b[0], b[1]))
        r.append(valu("v_cvt_pk_bf16_f32", a[3], b[2], b[3]))
        r.append(ds_write("ds_write_b128", vPw, a, P_BUF[pbuf] + nt*4096))
        res.append(r)
    return res

RARE = []
def check_items(name, mxbuf, bufX, bufY, first, has_pending, mxbase=160):
    def MXT(nt): return V(mxbase + nt*4, 4)
    rd = [ds_read("ds_read_b128", MXT(nt), vMXr, MX_BUF[mxbuf] + nt*256) for nt in range(NT)]
    c = []
    for nt in range(NT):
        x = MXT(nt)
        c.append(valu("v_max3_f32", x[0], x[0], x[1], x[2]))
        c.append(valu("v_max_f32", x[0], x[0], x[3]))
    if not first:
        c.append(valu("v_max3_f32", vMt[6], MXT(0)[0], MXT(1)[0], MXT(2)[0]))
        c.append(valu("v_max3_f32", vMt[6], vMt[6], MXT(3)[0], MXT(4)[0]))
        c.append(vcmp("v_cmp_lt_f32", "vcc", sTHR, vMt[6]))
        if has_pending:
            c.append([raw(f"s_cmp_lg_u32 {sPEND}, 0", reads=[sPEND], writes=['scc']),
                      raw(f"s_cbranch_scc1 R_{name}", kind='branch'),
                      raw(f"s_cbranch_vccnz R_{name}", kind='branch', reads=['vcc']),
                      label(f"B_{name}")])
        else:
            c.append([raw(f"s_cbranch_vccnz R_{name}", kind='branch', reads=['vcc']), label(f"B_{name}")])
    else:
        c.append([raw(f"s_branch R_{name}", kind='branch'), label(f"B_{name}")])
    R = [f"R_{name}:", "  s_nop 15"]
    if has_pending:
        R.append(f"  s_cmp_lg_u32 {sPEND}, 0")
        R.append(f"  s_cbranch_scc0 R2_{name}")
        R += rescale_O_text()
        R.append(f"  s_mov_b32 {sPEND}, 0")
        R.append(f"R2_{name}:")
    if not first:
        R.append(f"  s_cbranch_vccz B_{name}")
    for nt in range(NT):
        d = MXT(nt)[0]
        if not first:
            R.append(f"  v_max_f32 {d}, 0, {d}")
    for nt in range(NT):
        d = MXT(nt)[0]
        for kt in range(2):
            for r in range(4):
                R.append(f"  v_sub_f32 {Sacc(bufX,kt,nt)[r]}, {Sacc(bufX,kt,nt)[r]}, {d}")
                if bufY is not None:
                    R.append(f"  v_sub_f32 {Sacc(bufY,kt,nt)[r]}, {Sacc(bufY,kt,nt)[r]}, {d}")
        for r in range(4):
            R.append(f"  v_sub_f32 {NEGM(nt)[r]}, {NEGM(nt)[r]}, {d}")
        if not first:
            R.append(f"  v_sub_f32 {ALPHA(nt)}, 0, {d}")
            R.append(f"  v_exp_f32 {ALPHA(nt)}, {ALPHA(nt)}")
            R.append(f"  s_nop 0")
            R.append(f"  v_mul_f32 {L(nt)}, {L(nt)}, {ALPHA(nt)}")
    if not first:
        R.append(f"  s_mov_b32 {sPEND}, 1")
    R.append("  s_nop 3")
    R.append(f"  s_branch B_{name}")
    RARE.append((name, R))
    return rd, c

def rescale_O_text():
    R = []
    for mt in range(4):
        for nt in range(NT):
            o = Oacc(mt, nt)
            for r in range(4):
                R.append(f"  v_accvgpr_read_b32 {vT[r]}, {o[r]}")
            R.append("  s_nop 0")
            for r in range(4):
                R.append(f"  v_mul_f32 {vT[r]}, {vT[r]}, {ALPHA(nt)}")
            R.append("  s_nop 0")
            for r in range(4):
                R.append(f"  v_accvgpr_write_b32 {o[r]}, {vT[r]}")
    return R

def pv_streams(base, pbuf, vtag, first_early):
    vs, ps = [], []
    for i in range(4):
        dl = base + 20*i
        ea = max(first_early, dl - 20 - 0) if i >= 2 else first_early
        if i >= 2: ea = base + 20*(i-1) + 1
        for mt in range(4):
            for h in range(2):
                x = ds_read("ds_read_b64_tr_b16", VF(i & 1, mt).sub(2*h, 2), vVr[mt], i*4096 + h*2048)
                x.need = [f"v{vtag}_{i}"]
                vs.append([x, max(ea, dl-18), dl - 10 + (mt*2+h)//2, base + 20*i + mt])
        for nt in range(NT):
            k = i*5+nt
            d = base + 20*i + 4*nt
            e2 = max(first_early, d - 12)
            if k >= 4: e2 = max(e2, base + 4*(k-4) + 4)
            ps.append([ds_read("ds_read_b128", PF(k), vPr[i], P_BUF[pbuf] + nt*4096), e2, d - 8, d])
    return vs, ps

def iteration(j, name, tagloop=None, it=None):
    start = len(T)
    X = j & 1; Y = (j+1) & 1
    do_s = j < 7; do_pv = j >= 1
    mf = []
    if do_s: mf += s_mfmas(Y)
    nS = len(mf)
    if do_pv: mf += pv_mfmas()
    n = len(mf)
    streams = []
    rd, c = check_items(name, j & 1, X, Y if do_s else None, first=(j == 0), has_pending=(j >= 1), mxbase=160 if do_s else SBUF[Y])
    chk = [[x, 0, 0] for x in rd] + [[x, 10 if do_s else 4, 11] for x in c]
    sm0 = 14 if do_s else 8
    items = [x for t in softmax_items(X, j & 1) for x in t]
    tot = len(items)
    for k, x in enumerate(items):
        chk.append([x, sm0, sm0 + (n - 14 - sm0) * k // tot])
    streams.append(chk)
    if do_s and j + 2 <= 8:
        kl = []
        for s in range(8):
            for kt in range(2):
                f = 2*s + kt
                kl.append([k_load(kt, s), 5*f + 5, 5*f + 8])
        streams.append(kl)
    if do_pv:
        vs, ps = pv_streams(nS, (j-1) & 1, (j-1) & 1, max(0, nS - 18) if do_s else -1)
        streams.append(vs); streams.append(ps)
    vd = []
    for i in range(4):
        ea = (nS + 20*i + 4) if do_pv else 0
        for x in v_dma(i, j & 1):
            vd.append([x, ea, ea + 6])
    streams.append(vd)
    if do_s:
        mx = [[x, nS + 4 if do_pv else nS, nS + 10 + k] for k, x in enumerate(max_items(Y, (j+1) & 1))]
        streams.append(mx)
    E(schedule(mf, streams))
    E(valu("v_add_u32", vKo[0], 65536, vKo[0]))
    E(valu("v_add_u32", vKo[1], 65536, vKo[1]))
    E(sadd(sVOFF, sVOFF, 65536))
    E(waitall(vm=False))
    E(barrier())
    if tagloop is not None:
        for k, ins in enumerate(T[start:]):
            ins.tag = (tagloop, it, (name, k))

def final_pv():
    name = "fin"
    E(raw(f"s_cmp_lg_u32 {sPEND}, 0", reads=[sPEND], writes=['scc']))
    E(raw(f"s_cbranch_scc1 R_{name}", kind='branch'))
    E(label(f"B_{name}"))
    R = [f"R_{name}:", "  s_nop 15"] + rescale_O_text() + ["  s_nop 3", f"  s_branch B_{name}"]
    RARE.append((name, R))
    mf = pv_mfmas()
    vs, ps = pv_streams(0, 7 & 1, 7 & 1, -1)
    E(schedule(mf, [vs, ps]))

def outproj():
    t = vMt
    def swap(op, x, y): return I(f"{op} {x}, {y}", 'valu', [x, y], [x, y])
    for nt in range(NT): E(valu("v_mov_b32", t[nt], L(nt)))
    E(valu("v_mov_b32", t[5], t[4]))
    E(swap("v_permlane16_swap_b32", t[0], t[1]))
    E(swap("v_permlane16_swap_b32", t[2], t[3]))
    E(swap("v_permlane16_swap_b32", t[4], t[5]))
    E(valu("v_add_f32", t[0], t[0], t[1]))
    E(valu("v_add_f32", t[2], t[2], t[3]))
    E(valu("v_add_f32", t[4], t[4], t[5]))
    E(valu("v_mov_b32", t[5], t[4]))
    E(swap("v_permlane32_swap_b32", t[0], t[2]))
    E(swap("v_permlane32_swap_b32", t[4], t[5]))
    E(valu("v_add_f32", t[0], t[0], t[2]))
    E(valu("v_add_f32", t[4], t[4], t[5]))
    E(ds_write("ds_write_b32", vMXw, t[0], MX_BUF[0]))
    E(valu("v_and_b32", t[6], "0xff", vMXw))
    E(ds_write("ds_write_b32", t[6], t[4], MX_BUF[0] + 1024))
    vOd = V(4)
    E(valu("v_mul_u32_u24", vT[0], 4682, vLane))
    E(valu("v_lshrrev_b32", vT[0], 16, vT[0]))
    E(valu("v_mul_u32_u24", vT[1], 14, vT[0]))
    E(valu("v_sub_u32", vT[1], vLane, vT[1]))
    E(valu("v_min_u32", vT[0], 3, vT[0]))
    E(valu("v_mul_u32_u24", vT[0], 896, vT[0]))
    E(valu("v_lshl_add_u32", vT[0], vT[1], 4, vT[0]))
    E(smul(sT1, sW, 224))
    E(valu("v_add_u32", vOd, sT1, vT[0]))
    PST = 1088
    def wo_dma(ks):
        r = []
        for p in range(8):
            r.append(salu("s_add_u32", "m0", sWREG, ((ks & 1)*8 + p)*PST))
            r.append(smov(sT2, (32*ks + 4*p)*896))
            r.append(buf_dma(vOd, SWO, sT2, token=f"wo{ks}"))
        return r
    E(waitall(vm=False))
    E(wo_dma(0)); E(wo_dma(1))
    E(barrier())
    for nt in range(NT):
        E(ds_read("ds_read_b128", MXT(nt), vMXr, MX_BUF[0] + nt*256))
    for nt in range(NT):
        x = MXT(nt)
        E(valu("v_add_f32", x[0], x[0], x[1]))
        E(valu("v_add_f32", x[2], x[2], x[3]))
        E(valu("v_add_f32", x[0], x[0], x[2]))
        E(valu("v_rcp_f32", x[0], x[0], trans=True))
    qa = [V(5+i) for i in range(4)]
    E(valu("v_lshrrev_b32", vT[0], 1, vG))
    E(salu("s_lshl_b32", sT1, sW, 3))
    E(valu("v_add_u32", vT[0], sT1, vT[0]))
    E(valu("v_xor_b32", vT[0], vT[0], vJ))
    E(valu("v_lshlrev_b32", vT[0], 4, vT[0]))
    E(valu("v_lshl_add_u32", vT[0], vJ, 9, vT[0]))
    E(valu("v_and_b32", vT[1], 1, vG))
    E(valu("v_lshl_add_u32", qa[0], vT[1], 3, vT[0]))
    for mt in range(1, 4):
        E(valu("v_xor_b32", qa[mt], mt*32, qa[0]))
    k = 0
    for nt in range(NT):
        for mt in range(4):
            o = Oacc(mt, nt)
            q = V(16 + (k % 8)*4, 4); k += 1
            for r in range(4):
                E(I(f"v_accvgpr_read_b32 {q[r]}, {o[r]}", 'valu', [o[r]], [q[r]]))
            for r in range(4):
                E(valu("v_mul_f32", q[r], q[r], MXT(nt)[0]))
            E(valu("v_cvt_pk_bf16_f32", q[0], q[0], q[1]))
            E(valu("v_cvt_pk_bf16_f32", q[1], q[2], q[3]))
            E(ds_write("ds_write_b64", qa[mt], q.sub(0,2), nt*8192))
    E(waitall(vm=False))
    E(barrier())
    vq0 = V(9)
    E(valu("v_xor_b32", vT[0], vG, vJ))
    E(valu("v_lshlrev_b32", vT[0], 4, vT[0]))
    E(valu("v_lshl_add_u32", vq0, vJ, 9, vT[0]))
    for ks in range(8):
        E(valu("v_xor_b32", vT[ks & 3], ks*64, vq0))
        for nt in range(NT):
            E(ds_read("ds_read_b128", Qf(nt, ks), vT[ks & 3], nt*8192))
    vwa = V(10)
    E(valu("v_lshrrev_b32", vT[0], 2, vJ))
    E(valu("v_and_b32", vT[1], 3, vJ))
    E(valu("v_mul_u32_u24", vT[0], 224, vT[0]))
    E(valu("v_lshl_add_u32", vT[0], vT[1], 3, vT[0]))
    E(valu("v_mul_u32_u24", vT[1], 2*PST, vG))
    E(valu("v_add_u32", vT[0], vT[0], vT[1]))
    E(valu("v_add_u32", vwa, sWREG, vT[0]))
    def YA(mt, nt): return V(16 + (mt*5+nt)*4, 4)
    def WF(par, mt): return V(160 + par*28 + mt*4, 4)
    def frag_reads(ks):
        r = []
        par = ks & 1
        for mt in range(7):
            for h in range(2):
                x = ds_read("ds_read_b64_tr_b16", WF(par, mt).sub(2*h, 2), vwa, (par*8 + h)*PST + mt*32)
                x.need = [f"wo{ks}"]
                r.append(x)
        return r
    E(frag_reads(0))
    for ks in range(8):
        par = ks & 1
        mf = []
        for mt in range(7):
            for nt in range(NT):
                c = YA(mt, nt) if ks > 0 else 0
                mf.append(mfma16(YA(mt, nt), WF(par, mt), Qf(nt, ks), c))
        st = []
        if ks + 1 < 8:
            st.append([[x, 0, i] for i, x in enumerate(frag_reads(ks+1))])
        if ks + 2 < 8:
            st.append([[x, 31, 32] for i, x in enumerate(wo_dma(ks+2))])
        E(schedule(mf, st))
    vy = V(4)
    E(valu("v_mul_u32_u24", vT[0], 1792, vJ))
    E(valu("v_lshl_add_u32", vT[0], vG, 4, vT[0]))
    E(smul(sT1, sW, 448))
    E(valu("v_add_u32", vy, sT1, vT[0]))
    for nt in range(NT):
        E(smov(sT2, nt*16*1792))
        for mt in range(7):
            E(buf_store("buffer_store_dwordx4", YA(mt, nt), vy, SY, sT2, mt*64))

def build_attn():
    setup()
    if DEBUG: dump_setup()
    qproj()
    if DEBUG & 1:
        dump([Qf(nt, s_) for nt in range(NT) for s_ in range(8)], 0)
    main_addr_setup()
    mf = s_mfmas(0)
    kl = []
    for s in range(8):
        for kt in range(2):
            f = 2*s+kt
            kl.append([None, 5*f+5, 5*f+8])
    E(valu("v_add_u32", vKo[0], 65536, vKo[0]))
    E(valu("v_add_u32", vKo[1], 65536, vKo[1]))
    idx = 0
    for s in range(8):
        for kt in range(2):
            kl[idx][0] = k_load(kt, s); idx += 1
    E(schedule(mf, [kl]))
    E(valu("v_add_u32", vKo[0], 65536, vKo[0]))
    E(valu("v_add_u32", vKo[1], 65536, vKo[1]))
    E(max_items(0, 0))
    E(waitall(vm=False))
    E(barrier())
    iteration(0, "i0")
    for it in range(3):
        st = len(T)
        if it == 0: pass
        hdr = [label("L_MAIN")]
        E(hdr)
        for k, ins in enumerate(T[st:]): ins.tag = ("main", it, ("hdr", k))
        iteration(1+2*it, "iA", "main", it)
        iteration(2+2*it, "iB", "main", it)
        st = len(T)
        E(sadd(sCNT, sCNT, 1))
        E(raw(f"s_cmp_lt_u32 {sCNT}, 3", reads=[sCNT], writes=['scc']))
        E(raw("s_cbranch_scc1 L_MAIN", kind='branch'))
        for k, ins in enumerate(T[st:]): ins.tag = ("main", it, ("tail", k))
    iteration(7, "i7")
    final_pv()
    if DEBUG & 2:
        dump([Oacc(mt, nt) for mt in range(4) for nt in range(NT)], 40)
        dump([V(228, 4), V(232, 4)] + [NEGM(nt) for nt in range(NT)], 60)
    outproj()

def finish():
    pass

T.clear()
build_attn()
T.insert(3, smov(sCNT, 0))
insert_waits(T)
insert_nops(T)
rare = {}
for name, R in RARE:
    if name in rare: assert rare[name] == R, name
    rare[name] = R
body = emit(fold(T))

out = []
out.append("; @launch kernel=gqa_attn_kernel grid=(256,1,1) block=(256,1,1) lds=163840")
out.append("; @launch kernel=gqa_reduce_kernel grid=(504,1,1) block=(256,1,1) lds=0")
out.append('.amdgcn_target "amdgcn-amd-amdhsa--gfx950"')
out.append(".text")
out.append(".globl gqa_attn_kernel\n.p2align 8\n.type gqa_attn_kernel,@function\ngqa_attn_kernel:")
out += body
out.append("L_END:\n  s_endpgm")
for name, R in rare.items(): out += R
red = """
.globl gqa_reduce_kernel
.p2align 8
.type gqa_reduce_kernel,@function
gqa_reduce_kernel:
  s_cmp_ge_u32 s2, 504
  s_cbranch_scc1 L_REND
  s_load_dwordx2 s[4:5], s[0:1], 40
  s_load_dwordx2 s[6:7], s[0:1], 56
  s_lshl_b32 s3, s2, 8
  v_add_u32 v1, s3, v0
  v_lshlrev_b32 v2, 4, v1
  v_lshlrev_b32 v3, 3, v1
  s_waitcnt lgkmcnt(0)
  s_mov_b32 s8, s6
  s_mov_b32 s9, s7
  s_mov_b32 s10, 33030144
  s_mov_b32 s11, 0x00020000
  s_mov_b32 s12, s4
  s_mov_b32 s13, s5
  s_mov_b32 s14, 1032192
  s_mov_b32 s15, 0x00020000
  s_mov_b32 s16, 0
"""
for h in range(16):
    red += f"  buffer_load_dwordx4 v[{8+4*h}:{11+4*h}], v2, s[8:11], s16 offen\n"
    if h < 15: red += "  s_add_u32 s16, s16, 2064384\n"
def addq(d, a):
    return "".join(f"  v_add_f32 v{8+4*d+r}, v{8+4*d+r}, v{8+4*a+r}\n" for r in range(4))
red += "  s_waitcnt vmcnt(8)\n"
for h in range(0, 8, 2): red += addq(h, h+1)
red += addq(0, 2) + addq(4, 6) + addq(0, 4)
red += "  s_waitcnt vmcnt(0)\n"
for h in range(8, 16, 2): red += addq(h, h+1)
red += addq(8, 10) + addq(12, 14) + addq(8, 12) + addq(0, 8)
red += """  v_cvt_pk_bf16_f32 v8, v8, v9
  v_cvt_pk_bf16_f32 v9, v10, v11
  buffer_store_dwordx2 v[8:9], v3, s[12:15], 0 offen
L_REND:
  s_endpgm
"""
out.append(red)
out.append(""".section .rodata,"a"
.p2align 6
.amdhsa_kernel gqa_attn_kernel
  .amdhsa_next_free_vgpr 512
  .amdhsa_next_free_sgpr 96
  .amdhsa_accum_offset 256
  .amdhsa_group_segment_fixed_size 0
  .amdhsa_kernarg_size 64
  .amdhsa_user_sgpr_count 2
  .amdhsa_user_sgpr_kernarg_segment_ptr 1
  .amdhsa_system_sgpr_workgroup_id_x 1
.end_amdhsa_kernel
.p2align 6
.amdhsa_kernel gqa_reduce_kernel
  .amdhsa_next_free_vgpr 72
  .amdhsa_next_free_sgpr 32
  .amdhsa_accum_offset 72
  .amdhsa_group_segment_fixed_size 0
  .amdhsa_kernarg_size 64
  .amdhsa_user_sgpr_count 2
  .amdhsa_user_sgpr_kernarg_segment_ptr 1
  .amdhsa_system_sgpr_workgroup_id_x 1
.end_amdhsa_kernel
""")
open("standalone__gqa_block_cached__near_ridge.s", "w").write("\n".join(out) + "\n")
print("instructions:", len(body))
```

```python
import sys
from asmlib import *

NT = 5
DEBUG = 0
OUT = "standalone__gqa_block_cached__near_ridge.s"
XB1 = 30
for a in sys.argv[1:]:
    if a.startswith("debug="): DEBUG = int(a.split("=")[1])
    if a.startswith("out="): OUT = a.split("=")[1]
    if a.startswith("xb="): XB1 = int(a.split("=")[1])

P_BUF = [0, 20480]
MX_OFF = 40960
KR0 = 43008; KR_SZ = 16384
VR0 = KR0 + 4*KR_SZ; VR_SZ = 12288
XW0 = 73728
QS0 = VR0
OS0 = 0
WO0 = 43008; PST = 960; WO_SZ = 3*8*PST
YS0 = 43008

SX, SWQ, SK, SV, SWO, SY = S(4,4), S(8,4), S(12,4), S(16,4), S(20,4), S(24,4)
sW, sQ, sH, sB = S(28), S(29), S(30), S(31)
sRING = S(32)
sT0, sT1, sT2, sT3 = S(33), S(34), S(35), S(44)
sVOFF = S(45)
sCNT = S(46)
sPEND = S(47)
sTHR = S(48)
sSC = S(49)
sKOFF = S(50)
sKOFF1 = S(51)
sKARG = S(52,16)
sT4, sT5 = S(68), S(69)
sW8 = S(70)
sVSL = S(71)
sVDL = S(72)
sVWR = S(73)
SD = S(76, 4)

vTid, vLane, vG, vJ = V(0), V(1), V(2), V(3)
vDbg = V(95)
vT = [V(4+i) for i in range(4)]
def Qf(nt, s): return A((nt*8+s)*4, 4)

class Ctx:
    def __init__(self): self.T = []; self.stamps = []
C = None
def E(x):
    if isinstance(x, list):
        for y in x: E(y)
    else:
        C.T.append(x)
def smul(d, a, imm): return salu("s_mul_i32", d, a, imm, scc=False)
def sadd(d, a, b): return salu("s_add_u32", d, a, b)
def smov(d, a): return salu("s_mov_b32", d, a, scc=False)
def make_srd(srd, ptr_lo, off_sreg, size):
    E(salu("s_add_u32", srd[0], ptr_lo, off_sreg))
    E(salu("s_addc_u32", srd[1], S(ptr_lo.base+1), 0))
    E(smov(srd[2], size))
    E(smov(srd[3], "0x00020000"))

def schedule(mfmas, streams, cap=2):
    out = []
    pos = [0]*len(streams)
    n = len(mfmas)
    def put(it): out.extend(it[0] if isinstance(it[0], list) else [it[0]])
    for si, st in enumerate(streams):
        while pos[si] < len(st) and st[pos[si]][1] < 0:
            put(st[pos[si]]); pos[si] += 1
    for m in range(n):
        for si, st in enumerate(streams):
            last = -1
            for k in range(pos[si], len(st)):
                if len(st[k]) > 3 and st[k][3] <= m: last = k
            while pos[si] <= last:
                put(st[pos[si]]); pos[si] += 1
        out.append(mfmas[m])
        budget = cap
        while budget > 0:
            best = None
            for si, st in enumerate(streams):
                if pos[si] < len(st):
                    it = st[pos[si]]
                    if it[1] <= m and (best is None or it[2] < best[0]): best = (it[2], si)
            if best is None: break
            si = best[1]
            it = streams[si][pos[si]]; pos[si] += 1
            ins = it[0] if isinstance(it[0], list) else [it[0]]
            for x in ins:
                out.append(x); budget -= x.cost
    for si, st in enumerate(streams):
        while pos[si] < len(st):
            put(st[pos[si]]); pos[si] += 1
    return out

def stamp(name):
    if not (DEBUG & 4): return
    k = len(C.stamps); C.stamps.append(name)
    E(I("s_memtime s[80:81]", 'smem', [], [S(80,2)]))
    E(smov(S(82+k), S(80)))
def dump_setup():
    E(salu("s_lshl_b32", sT1, S(2), 19))
    E(sadd(sT1, sT1, 64 << 20))
    make_srd(SD, S(66), sT1, 1 << 19)
    E(valu("v_lshlrev_b32", vDbg, 4, vTid))
def dump(quads, base_idx):
    for i, qd in enumerate(quads):
        E(smov(sT2, (base_idx + i)*8192))
        E(buf_store("buffer_store_dwordx4", qd, vDbg, SD, sT2))
def stamp_dump():
    if not (DEBUG & 4): return
    E(valu("v_lshlrev_b32", vDbg, 4, vTid))
    for k in range(len(C.stamps)):
        E(valu("v_mov_b32", V(16+k), S(82+k)))
    n = (len(C.stamps)+3)//4
    dump([V(16+4*i, 4) for i in range(n)], 61)

def bar():
    E(waitall(vm=False)); E(barrier())

def setup_common():
    E(raw("s_cmp_ge_u32 s2, 256", writes=['scc']))
    E(raw("s_cbranch_scc1 L_END", kind='branch'))
    E(I("s_load_dwordx16 s[52:67], s[0:1], 0", 'smem', [], [sKARG]))
    E(smov(sCNT, 0))
    E(valu("v_and_b32", vLane, 63, vTid))
    E(valu("v_lshrrev_b32", vT[0], 6, vTid))
    E(valu("v_lshrrev_b32", vG, 4, vLane))
    E(valu("v_and_b32", vJ, 15, vLane))
    E(I(f"v_readfirstlane_b32 {sW8}, {vT[0]}", 'valu', [vT[0]], [sW8]))
    E(salu("s_and_b32", sW, sW8, 3))
    E(salu("s_and_b32", sT0, S(2), 7))
    E(salu("s_lshr_b32", sT1, S(2), 3))
    E(salu("s_lshr_b32", sB, sT1, 2))
    E(salu("s_and_b32", sQ, sT1, 3))
    E(salu("s_lshr_b32", sT2, sQ, 1))
    E(salu("s_lshl_b32", sH, sT0, 1))
    E(sadd(sH, sH, sT2))
    E(salu("s_and_b32", sT2, sQ, 1))
    E(smul(sT3, sB, 144))
    E(smul(sT1, sT2, 72))
    E(sadd(sT3, sT3, sT1))
    E(smul(sT1, sT3, 896))
    make_srd(SX, S(52), sT1, 64512)
    E(smul(sT1, sH, 512))
    make_srd(SWQ, S(58), sT1, 0)
    E(salu("s_sub_u32", SWQ[2], 3670016, sT1))
    E(salu("s_lshl_b32", sT1, sB, 3))
    E(sadd(sT1, sT1, sT0))
    E(salu("s_lshl_b32", sT1, sT1, 19))
    make_srd(SK, S(54), sT1, 524288)
    make_srd(SV, S(56), sT1, 524288)
    E(smul(sT1, sH, 229376))
    make_srd(SWO, S(60), sT1, 229376)
    E(smul(sT1, sH, 1152))
    E(sadd(sT1, sT1, sT3))
    E(smul(sT1, sT1, 1792))
    make_srd(SY, S(66), sT1, 129024)
    E(smov(sTHR, "0x41000000"))
    E(smov(sSC, "0x3db8aa3b"))
    E(smov(sPEND, 0))
    if DEBUG: dump_setup()
    E(raw(f"s_cmp_ge_u32 {sW8}, 4", reads=[sW8], writes=['scc']))
    E(raw("s_cbranch_scc1 L_ROLE_P", kind='branch'))

def qproj(role):
    nts = [0,1,2] if role == 0 else [3,4]
    def QA(mt, k): return A((mt*3+k)*4, 4)
    def WF(par, mt): return V(16 + par*16 + mt*4, 4)
    def XF(par, k): return V(48 + par*12 + k*4, 4)
    xa = [V(72+i) for i in range(4)]
    xb = [V(76+i) for i in range(4)]
    wa = [V(80+i) for i in range(4)]
    vWd = V(84)
    sWQR = sRING
    E(salu("s_lshl_b32", sWQR, sW, 14))
    E(sadd(sWQR, sWQR, XW0))
    E(valu("v_lshrrev_b32", vT[0], 3, vLane))
    E(valu("v_and_b32", vT[1], 6, vT[0]))
    E(valu("v_and_b32", vT[2], 7, vLane))
    E(valu("v_xor_b32", vT[1], vT[1], vT[2]))
    E(valu("v_lshlrev_b32", vT[1], 4, vT[1]))
    E(valu("v_lshlrev_b32", vT[0], 13, vT[0]))
    E(valu("v_add_u32", vWd, vT[0], vT[1]))
    E(salu("s_lshl_b32", sT1, sW, 7))
    E(valu("v_add_u32", vWd, sT1, vWd))
    def wq_dma(ks):
        r = []
        for p in ((0,1) if role == 0 else (2,3)):
            r.append([salu("s_add_u32", "m0", sWQR, (ks & 3)*4096 + p*1024),
                      smov(sT2, ks*262144 + p*65536),
                      buf_dma(vWd, SWQ, sT2, token=f"wq{ks}")])
        return r
    E(wq_dma(0)); E(wq_dma(1))
    E(smul(sT0, sW8, 9))
    for i in range(9):
        tv = vT[i & 3]
        E(sadd(sT1, sT0, i))
        E(salu("s_and_b32", sT2, sT1, 15))
        E(valu("v_xor_b32", tv, sT2, vLane))
        E(valu("v_lshlrev_b32", tv, 4, tv))
        E(salu("s_lshl_b32", "m0", sT1, 10))
        E(smul(sT2, sT1, 896))
        E(buf_dma(tv, SX, sT2, token="x"))
    E(wq_dma(2)); E(wq_dma(3))
    E(valu("v_lshrrev_b32", vT[0], 2, vJ))
    E(valu("v_and_b32", vT[1], 3, vJ))
    E(valu("v_lshlrev_b32", vT[2], 10, vG))
    E(valu("v_lshl_add_u32", vT[2], vT[0], 7, vT[2]))
    E(valu("v_and_b32", vT[3], 2, vT[0]))
    E(valu("v_lshl_add_u32", vT[2], vT[3], 4, vT[2]))
    E(valu("v_lshl_add_u32", vT[2], vT[1], 3, vT[2]))
    E(valu("v_add_u32", wa[0], sWQR, vT[2]))
    for mt in range(1, 4):
        E(valu("v_xor_b32", wa[mt], mt*32, wa[0]))
    E(valu("v_xor_b32", vT[0], vG, vJ))
    E(valu("v_lshlrev_b32", vT[0], 4, vT[0]))
    E(valu("v_lshl_add_u32", xa[0], vJ, 10, vT[0]))
    for e in range(1, 4):
        E(valu("v_xor_b32", xa[e], e*64, xa[0]))
    if role == 1:
        E(valu("v_min_u32", vT[1], 7, vJ))
        E(valu("v_xor_b32", vT[0], vG, vT[1]))
        E(valu("v_lshlrev_b32", vT[0], 4, vT[0]))
        E(valu("v_lshl_add_u32", xb[0], vT[1], 10, vT[0]))
        E(valu("v_add_u32", xb[0], 65536, xb[0]))
        for e in range(1, 4):
            E(valu("v_xor_b32", xb[e], e*64, xb[0]))
    def frag_reads(ks):
        par = ks & 1
        r = []
        sl = (ks & 3)*4096
        for mt in range(4):
            r.append(ds_read("ds_read_b64_tr_b16", WF(par, mt).sub(0,2), wa[mt], sl))
            r.append(ds_read("ds_read_b64_tr_b16", WF(par, mt).sub(2,2), wa[mt^2], sl+512))
        e, a = ks & 3, ks >> 2
        for k, nt in enumerate(nts):
            if nt < 4: r.append(ds_read("ds_read_b128", XF(par, k), xa[e], nt*16384 + a*256))
            else: r.append(ds_read("ds_read_b128", XF(par, k), xb[e], a*256))
        return r
    for kp in range(7):
        k0, k1 = 2*kp, 2*kp+1
        E(raw("s_nop 0", need=(["x"] if kp == 0 else []) + [f"wq{k0}", f"wq{k1}"]))
        bar()
        if kp == 0: stamp("xwait")
        E(frag_reads(k0))
        for ks in (k0, k1):
            par = ks & 1
            mf = []
            for k in range(len(nts)):
                for mt in range(4):
                    c = QA(mt, k) if ks > 0 else 0
                    mf.append(mfma16(QA(mt, k), WF(par, mt), XF(par, k), c))
            st = []
            if ks == k0:
                st.append([[x, 0, i] for i, x in enumerate(frag_reads(k1))])
                if kp >= 1 and k0 + 2 < 14:
                    d = wq_dma(k0+2) + wq_dma(k1+2)
                    st.append([[x, 1+2*i, 2+2*i] for i, x in enumerate(d)])
            E(schedule(mf, st))
    stamp("qmfma")
    bar()
    return QA, nts

def stage_write(acc_fn, nts, base, scale_fn):
    qa = [V(72+i) for i in range(4)]
    E(valu("v_lshrrev_b32", vT[0], 1, vG))
    E(salu("s_lshl_b32", sT1, sW, 3))
    E(valu("v_add_u32", vT[0], sT1, vT[0]))
    E(valu("v_xor_b32", vT[0], vT[0], vJ))
    E(valu("v_lshlrev_b32", vT[0], 4, vT[0]))
    E(valu("v_lshl_add_u32", vT[0], vJ, 9, vT[0]))
    E(valu("v_and_b32", vT[1], 1, vG))
    E(valu("v_lshl_add_u32", vT[0], vT[1], 3, vT[0]))
    E(valu("v_add_u32", qa[0], base, vT[0]))
    for mt in range(1, 4):
        E(valu("v_xor_b32", qa[mt], mt*32, qa[0]))
    c = 0
    for k, nt in enumerate(nts):
        for mt in range(4):
            o = acc_fn(mt, k)
            q = V(16 + (c % 8)*4, 4); c += 1
            for r in range(4):
                E(I(f"v_accvgpr_read_b32 {q[r]}, {o[r]}", 'valu', [o[r]], [q[r]]))
            for r in range(4):
                E(valu("v_mul_f32", q[r], scale_fn(k), q[r]))
            E(valu("v_cvt_pk_bf16_f32", q[0], q[0], q[1]))
            E(valu("v_cvt_pk_bf16_f32", q[1], q[2], q[3]))
            E(ds_write("ds_write_b64", qa[mt], q.sub(0,2), nt*8192))

vKd, vKr, vPw, vMXw, vMXr = V(8), V(9), V(10), V(11), V(12)
def KF(f): return V(16 + (f % 4)*4, 4)
def Sacc(kt, nt): return V(32 + (kt*5+nt)*4, 4)
def NEGM(nt): return V(72+nt)
def L(nt): return V(77+nt)
vMt = [V(82+i) for i in range(8)]
def MXT_S(nt): return V(16 + nt*4, 4) if nt < 4 else V(90, 4)
def swap(op, x, y): return I(f"{op} {x}, {y}", 'valu', [x, y], [x, y])
def cross_reduce(op):
    t = vMt
    r = []
    r.append(valu("v_mov_b32", t[5], t[4]))
    r.append(swap("v_permlane16_swap_b32", t[0], t[1]))
    r.append(swap("v_permlane16_swap_b32", t[2], t[3]))
    r.append(swap("v_permlane16_swap_b32", t[4], t[5]))
    r.append(valu(op, t[0], t[0], t[1]))
    r.append(valu(op, t[2], t[2], t[3]))
    r.append(valu(op, t[4], t[4], t[5]))
    r.append(valu("v_mov_b32", t[5], t[4]))
    r.append(swap("v_permlane32_swap_b32", t[0], t[2]))
    r.append(swap("v_permlane32_swap_b32", t[4], t[5]))
    r.append(valu(op, t[0], t[0], t[2]))
    r.append(valu(op, t[4], t[4], t[5]))
    r.append(valu("v_and_b32", t[6], "0xff", vMXw))
    r.append(ds_write("ds_write_b32", vMXw, t[0], MX_OFF))
    r.append(ds_write("ds_write_b32", t[6], t[4], MX_OFF + 1024))
    return r

RARE = []
def k_dma_piece(f, tag):
    ks, kt = f >> 1, f & 1
    return [salu("s_add_u32", "m0", sRING, f*1024 - ks*64), buf_dma(vKd, SK, sKOFF1 if kt else sKOFF, off=ks*64, token=f"k{tag}_{f}")]
def k_frag_read(f, tag):
    x = ds_read("ds_read_b128", KF(f), vKr, f*1024); x.need = [f"k{tag}_{f}"]; return x

def role_S():
    stamp("start")
    QA, nts = qproj(0)
    E(salu("s_lshl_b32", sRING, sW, 14)); E(sadd(sRING, sRING, KR0))
    E(salu("s_lshl_b32", sKOFF, sW, 14)); E(sadd(sKOFF1, sKOFF, 8192))
    E(valu("v_lshrrev_b32", vT[0], 2, vLane))
    E(valu("v_lshrrev_b32", vT[1], 4, vLane))
    E(valu("v_and_b32", vT[2], 3, vLane))
    E(valu("v_xor_b32", vT[1], vT[1], vT[2]))
    E(valu("v_lshlrev_b32", vT[1], 4, vT[1]))
    E(valu("v_lshl_add_u32", vKd, vT[0], 9, vT[1]))
    for f in range(16): E(k_dma_piece(f, 0))
    E(sadd(sKOFF, sKOFF, 65536)); E(sadd(sKOFF1, sKOFF1, 65536))
    stage_write(QA, nts, QS0, lambda k: sSC)
    bar()
    E(valu("v_xor_b32", vT[0], vG, vJ))
    E(valu("v_lshlrev_b32", vT[0], 4, vT[0]))
    E(valu("v_lshl_add_u32", vT[0], vJ, 9, vT[0]))
    E(valu("v_add_u32", V(72), QS0, vT[0]))
    for s in range(8):
        E(valu("v_xor_b32", vT[s & 3], s*64, V(72)))
        for nt in range(NT):
            E(ds_read("ds_read_b128", Qf(nt, s), vT[s & 3], nt*8192))
    E(valu("v_lshrrev_b32", vT[0], 2, vJ))
    E(valu("v_xor_b32", vT[0], vT[0], vG))
    E(valu("v_lshlrev_b32", vT[0], 4, vT[0]))
    E(valu("v_lshl_add_u32", vT[0], vJ, 6, vT[0]))
    E(valu("v_add_u32", vKr, sRING, vT[0]))
    E(salu("s_lshl_b32", sT1, sW, 2))
    E(valu("v_add_u32", vT[0], sT1, vG))
    E(valu("v_xor_b32", vT[0], vT[0], vJ))
    E(valu("v_lshlrev_b32", vT[0], 4, vT[0]))
    E(valu("v_lshl_add_u32", vPw, vJ, 8, vT[0]))
    E(valu("v_lshlrev_b32", vT[0], 4, vLane))
    E(valu("v_add_u32", vMXw, sT1, vT[0]))
    E(valu("v_lshlrev_b32", vMXr, 4, vJ))
    for nt in range(NT):
        E(valu("v_mov_b32", NEGM(nt), 0)); E(valu("v_mov_b32", L(nt), 0))
    for kt in range(2):
        for nt in range(NT):
            for r in range(4): E(valu("v_mov_b32", Sacc(kt, nt)[r], 0))
    for f in range(3): E(k_frag_read(f, 0))
    if DEBUG & 1: dump([Qf(nt, s_) for nt in range(NT) for s_ in range(8)], 0)
    E(raw("s_setprio 1"))
    stamp("qproj")
    bar()
    def step(j, name, tl=None, it=None):
        st0 = len(C.T)
        tag = j & 1
        mf = []
        for f in range(16):
            ks, kt = f >> 1, f & 1
            for nt in range(NT):
                mf.append(mfma16(Sacc(kt, nt), KF(f), Qf(nt, ks), Sacc(kt, nt)))
        kr = [[k_frag_read(f, tag), 5*(f-3) + 4, 5*(f-3) + 5, 5*f] for f in range(3, 16)]
        kd = [[k_dma_piece(f, tag ^ 1), 5*f + 1, 5*f + 2] for f in range(16)]
        E(schedule(mf, [kr, kd], cap=3))
        E(sadd(sKOFF, sKOFF, 65536)); E(sadd(sKOFF1, sKOFF1, 65536))
        for nt in range(NT):
            a, b = Sacc(0, nt), Sacc(1, nt); t = vMt[nt]
            E(valu("v_max3_f32", t, a[0], a[1], a[2])); E(valu("v_max3_f32", t, t, a[3], b[0]))
            E(valu("v_max3_f32", t, t, b[1], b[2])); E(valu("v_max_f32", t, t, b[3]))
        E(cross_reduce("v_max_f32"))
        bar()
        first = (j == 0)
        for nt in range(NT): E(ds_read("ds_read_b128", MXT_S(nt), vMXr, MX_OFF + nt*256))
        for nt in range(NT):
            x = MXT_S(nt)
            E(valu("v_max3_f32", x[0], x[0], x[1], x[2])); E(valu("v_max_f32", x[0], x[0], x[3]))
        if not first:
            E(valu("v_max3_f32", vMt[6], MXT_S(0)[0], MXT_S(1)[0], MXT_S(2)[0]))
            E(valu("v_max3_f32", vMt[6], vMt[6], MXT_S(3)[0], MXT_S(4)[0]))
            E(vcmp("v_cmp_lt_f32", "vcc", sTHR, vMt[6]))
            E(raw(f"s_cbranch_vccnz RS_{name}", kind='branch', reads=['vcc']))
        else:
            E(raw(f"s_branch RS_{name}", kind='branch'))
        E(label(f"BS_{name}"))
        R = [f"RS_{name}:"]
        for nt in range(NT):
            d = MXT_S(nt)[0]
            if not first: R.append(f"  v_max_f32 {d}, 0, {d}")
            for kt in range(2):
                for r in range(4): R.append(f"  v_sub_f32 {Sacc(kt,nt)[r]}, {Sacc(kt,nt)[r]}, {d}")
            R.append(f"  v_sub_f32 {NEGM(nt)}, {NEGM(nt)}, {d}")
            if not first:
                R += [f"  v_sub_f32 {vT[0]}, 0, {d}", f"  v_exp_f32 {vT[0]}, {vT[0]}", "  s_nop 0", f"  v_mul_f32 {L(nt)}, {L(nt)}, {vT[0]}"]
        R += ["  s_nop 1", f"  s_branch BS_{name}"]
        RARE.append((f"S_{name}", R))
        for nt in range(NT):
            a, b = Sacc(0, nt), Sacc(1, nt)
            e = [a[0],a[1],a[2],a[3],b[0],b[1],b[2],b[3]]
            for k in range(8):
                E(valu("v_exp_f32", e[k], e[k], trans=True))
                if k >= 1: E(valu("v_add_f32", L(nt), L(nt), e[k-1]))
            E(valu("v_cvt_pk_bf16_f32", a[0], a[0], a[1]))
            E(valu("v_add_f32", L(nt), L(nt), e[7]))
            E(valu("v_cvt_pk_bf16_f32", a[1], a[2], a[3]))
            E(valu("v_cvt_pk_bf16_f32", a[2], b[0], b[1]))
            E(valu("v_cvt_pk_bf16_f32", a[3], b[2], b[3]))
            E(ds_write("ds_write_b128", vPw, a, P_BUF[j & 1] + nt*4096))
            for r in range(4): E(valu("v_mov_b32", b[r], NEGM(nt)))
        E(waitall(vm=False))
        for nt in range(NT):
            for r in range(4): E(valu("v_mov_b32", Sacc(0, nt)[r], NEGM(nt)))
        if j < 7:
            for f in range(3): E(k_frag_read(f, tag ^ 1))
            E(barrier())
        else:
            E(barrier())
        if tl is not None:
            for k, ins in enumerate(C.T[st0:]): ins.tag = (tl, it, (name, k))
    step(0, "s0")
    stamp("it0")
    for it in range(3):
        st = len(C.T)
        E(label("LS_MAIN"))
        for k, ins in enumerate(C.T[st:]): ins.tag = ("mainS", it, ("hdr", k))
        step(1+2*it, "sA", "mainS", it)
        step(2+2*it, "sB", "mainS", it)
        st = len(C.T)
        E(sadd(sCNT, sCNT, 1))
        E(raw(f"s_cmp_lt_u32 {sCNT}, 3", reads=[sCNT], writes=['scc']))
        E(raw("s_cbranch_scc1 LS_MAIN", kind='branch'))
        for k, ins in enumerate(C.T[st:]): ins.tag = ("mainS", it, ("tail", k))
    stamp("loop")
    step(7, "s7")
    stamp("it7")
    E(raw("s_setprio 0"))
    for nt in range(NT): E(valu("v_mov_b32", vMt[nt], L(nt)))
    E(cross_reduce("v_add_f32"))
    if DEBUG & 2:
        dump([V(72, 4), V(76, 4), V(80, 4)], 60)
    outproj(0)

vVd, vPr, vVr = V(8), [V(9+i) for i in range(4)], [V(13+i) for i in range(4)]
vMXrP = V(17)
def VF(par, mt): return V(20 + par*16 + mt*4, 4)
def PF(i): return V(52 + (i % 3)*4, 4)
def MXT_P(nt): return V(64 + nt*4, 4)
def ALP(nt): return V(84+nt)
def Oacc(mt, nt): return A((mt*5+nt)*4, 4)

def role_P():
    E(label("L_ROLE_P"))
    stamp("start")
    QA, nts = qproj(1)
    stage_write(QA, nts, QS0, lambda k: sSC)
    bar()
    E(smul(sRING, sW, VR_SZ)); E(sadd(sRING, sRING, VR0))
    E(valu("v_xor_b32", vT[0], vG, vJ))
    E(valu("v_lshlrev_b32", vT[0], 4, vT[0]))
    E(valu("v_lshl_add_u32", vT[0], vJ, 8, vT[0]))
    for i in range(4):
        E(sadd(sT1, sQ, i)); E(salu("s_and_b32", sT1, sT1, 3)); E(salu("s_lshl_b32", sT1, sT1, 6))
        E(valu("v_xor_b32", vPr[i], sT1, vT[0]))
    E(valu("v_lshrrev_b32", vT[0], 2, vJ))
    E(valu("v_and_b32", vT[1], 3, vJ))
    E(valu("v_lshl_add_u32", vT[2], vG, 2, vT[0]))
    E(valu("v_and_b32", vT[3], 6, vT[2]))
    E(valu("v_lshlrev_b32", vT[2], 7, vT[2]))
    E(valu("v_lshl_add_u32", vT[2], vT[3], 4, vT[2]))
    E(valu("v_lshl_add_u32", vT[2], vT[1], 3, vT[2]))
    E(valu("v_add_u32", vVr[0], sRING, vT[2]))
    for mt in range(1, 4): E(valu("v_xor_b32", vVr[mt], mt*32, vVr[0]))
    E(valu("v_lshrrev_b32", vT[0], 3, vLane))
    E(valu("v_and_b32", vT[1], 6, vT[0]))
    E(valu("v_and_b32", vT[2], 7, vLane))
    E(valu("v_xor_b32", vT[1], vT[1], vT[2]))
    E(valu("v_lshlrev_b32", vT[1], 4, vT[1]))
    E(valu("v_lshl_add_u32", vT[0], vT[0], 9, vT[1]))
    E(salu("s_lshl_b32", sT1, sW, 7))
    E(valu("v_add_u32", vVd, sT1, vT[0]))
    E(valu("v_lshlrev_b32", vMXrP, 4, vJ))
    for i in range(80):
        E(I(f"v_accvgpr_write_b32 a{i}, 0", 'valu', [], [A(i)]))
    E(smov(sVOFF, 0))
    E(smov(sVWR, 0))
    E(smov(sVSL, 0))
    E(smov(S(74), "0xffffe000")); E(smov(S(75), 4096))
    stamp("qproj")
    bar()
    def v_dma(i, tagn):
        r = []
        hd = [sadd(sT5, sQ, i), salu("s_and_b32", sT5, sT5, 3), salu("s_lshl_b32", sT5, sT5, 14), sadd(sT5, sT5, sVOFF),
              sadd(sT4, sRING, sVWR)]
        for p in range(4):
            it = (hd if p == 0 else []) + [salu("s_add_u32", "m0", sT4, p*1024 - 0), sadd(sT3, sT5, p*4096), buf_dma(vVd, SV, sT3, token=f"v{tagn}")]
            if p == 3:
                it += [sadd(sVWR, sVWR, 4096), raw(f"s_cmp_eq_u32 {sVWR}, 12288", reads=[sVWR], writes=['scc']),
                       I(f"s_cselect_b32 {sVWR}, 0, {sVWR}", 'salu', [sVWR, 'scc'], [sVWR])]
                if i == 3: it.append(sadd(sVOFF, sVOFF, 65536))
            r.append(it)
        return r
    def adv_read_slot():
        r = [sadd(sVSL, sVSL, 4096), raw(f"s_cmp_eq_u32 {sVSL}, 12288", reads=[sVSL], writes=['scc']),
             I(f"s_cselect_b32 {sVDL}, {S(74)}, {S(75)}", 'salu', ['scc', S(74), S(75)], [sVDL]),
             I(f"s_cselect_b32 {sVSL}, 0, {sVSL}", 'salu', [sVSL, 'scc'], [sVSL])]
        for mt in range(4): r.append(valu("v_add_u32", vVr[mt], sVDL, vVr[mt]))
        return r
    for i in range(3):
        for it in v_dma(i, i % 3): E(it)
    def check(name, first):
        r = [ds_read("ds_read_b128", MXT_P(nt), vMXrP, MX_OFF + nt*256) for nt in range(NT)]
        if not first:
            for nt in range(NT):
                x = MXT_P(nt)
                r.append(valu("v_max3_f32", x[0], x[0], x[1], x[2])); r.append(valu("v_max_f32", x[0], x[0], x[3]))
            r.append(valu("v_max3_f32", vT[0], MXT_P(0)[0], MXT_P(1)[0], MXT_P(2)[0]))
            r.append(valu("v_max3_f32", vT[0], vT[0], MXT_P(3)[0], MXT_P(4)[0]))
            r.append(vcmp("v_cmp_lt_f32", "vcc", sTHR, vT[0]))
            r.append([raw(f"s_cbranch_vccnz RP_{name}", kind='branch', reads=['vcc']), label(f"BP_{name}")])
            R = [f"RP_{name}:"]
            for nt in range(NT):
                d = MXT_P(nt)[0]
                R += [f"  v_max_f32 {d}, 0, {d}", f"  v_sub_f32 {ALP(nt)}, 0, {d}", f"  v_exp_f32 {ALP(nt)}, {ALP(nt)}"]
            R += [f"  s_mov_b32 {sPEND}, 1", "  s_nop 1", f"  s_branch BP_{name}"]
            RARE.append((f"P_{name}", R))
        else:
            r = []
        return r
    def pend(name):
        E(raw(f"s_cmp_lg_u32 {sPEND}, 0", reads=[sPEND], writes=['scc']))
        E(raw(f"s_cbranch_scc1 RO_{name}", kind='branch'))
        E(label(f"BO_{name}"))
        R = [f"RO_{name}:", "  s_nop 15"]
        for nt in range(NT):
            for mt in range(4):
                o = Oacc(mt, nt)
                for r in range(4): R.append(f"  v_accvgpr_read_b32 {vT[r]}, {o[r]}")
                R.append("  s_nop 0")
                for r in range(4): R.append(f"  v_mul_f32 {vT[r]}, {vT[r]}, {ALP(nt)}")
                R.append("  s_nop 0")
                for r in range(4): R.append(f"  v_accvgpr_write_b32 {o[r]}, {vT[r]}")
        R += [f"  s_mov_b32 {sPEND}, 0", "  s_nop 3", f"  s_branch BO_{name}"]
        RARE.append((f"O_{name}", R))
    bar()
    bar()
    stamp("it0")
    def pvstep(j, name, tl=None, it=None, last=False):
        st0 = len(C.T)
        pend(name)
        mf = []
        for i in range(4):
            for nt in range(NT):
                for mt in range(4):
                    mf.append(mfma16(Oacc(mt, nt), VF(i & 1, mt), PF(i*5+nt), Oacc(mt, nt)))
        vs, ps, vd = [], [], []
        for i in range(4):
            n = 4*j + i
            dl = 20*i
            ea = -1 if i == 0 else (20*(i-1) + 1 if i >= 2 else 0)
            items = []
            for mt in range(4):
                for h in range(2):
                    x = ds_read("ds_read_b64_tr_b16", VF(i & 1, mt).sub(2*h, 2), vVr[mt], h*2048)
                    x.need = [f"v{n % 3}"]
                    items.append(x)
            for k, x in enumerate(items):
                vs.append([x, max(ea, dl-16) if i else -1, dl - 10 + k//2, dl + k//2])
            vs.append([adv_read_slot(), max(ea, dl-16) if i else -1, dl - 5, dl + 4])
            for nt in range(NT):
                k = i*5+nt
                d = 20*i + 4*nt
                e2 = d - 10 if d - 10 >= 0 else -1
                if k >= 3: e2 = max(e2, 4*(k-3) + 4)
                ps.append([ds_read("ds_read_b128", PF(k), vPr[i], P_BUF[j & 1] + nt*4096), e2, d - 6, d])
            nn = n + 3
            if True:
                for p, x in enumerate(v_dma((i+3) & 3, nn % 3)):
                    vd.append([x, dl + 4 + 4*p, dl + 5 + 4*p])
        streams = [vs, ps, vd]
        if not last:
            xs = [[[waitall(vm=False), barrier()], XB1, XB1, XB1 + 1]]
            xs += [[x, XB1, XB1 + 2 + k] for k, x in enumerate(check(name, False))]
            streams.append(xs)
        E(schedule(mf, streams, cap=3))
        if not last:
            bar()
        if tl is not None:
            for k, ins in enumerate(C.T[st0:]): ins.tag = (tl, it, (name, k))
    pvstep(0, "p0")
    for it in range(3):
        st = len(C.T)
        E(label("LP_MAIN"))
        for k, ins in enumerate(C.T[st:]): ins.tag = ("mainP", it, ("hdr", k))
        pvstep(1+2*it, "pA", "mainP", it)
        pvstep(2+2*it, "pB", "mainP", it)
        st = len(C.T)
        E(sadd(sCNT, sCNT, 1))
        E(raw(f"s_cmp_lt_u32 {sCNT}, 3", reads=[sCNT], writes=['scc']))
        E(raw("s_cbranch_scc1 LP_MAIN", kind='branch'))
        for k, ins in enumerate(C.T[st:]): ins.tag = ("mainP", it, ("tail", k))
    stamp("loop")
    stamp("it7")
    pvstep(7, "p7", last=True)
    if DEBUG & 2:
        E(valu("v_lshlrev_b32", vDbg, 4, vTid))
        dump([Oacc(mt, nt) for mt in range(4) for nt in range(NT)], 40)
    outproj(1)

def outproj(role):
    stamp("finpv")
    nts = [0,1,2] if role == 0 else [3,4]
    E(waitall())
    bar()
    E(smul(sRING, sW, WO_SZ)); E(sadd(sRING, sRING, WO0))
    vOd = V(8)
    E(valu("v_mul_u32_u24", vT[0], 4682, vLane))
    E(valu("v_lshrrev_b32", vT[0], 16, vT[0]))
    E(valu("v_mul_u32_u24", vT[1], 14, vT[0]))
    E(valu("v_sub_u32", vT[1], vLane, vT[1]))
    E(valu("v_mul_u32_u24", vT[0], 896, vT[0]))
    E(valu("v_lshl_add_u32", vT[0], vT[1], 4, vT[0]))
    E(smul(sT1, sW, 224))
    E(valu("v_add_u32", vOd, sT1, vT[0]))
    def exec_lo(): return raw("s_mov_b32 exec_hi, 0x00ffffff", writes=['exec'])
    def exec_all(): return raw("s_mov_b32 exec_hi, -1", writes=["exec"])
    def wo_dma(ks):
        r = []
        for p in (range(0,4) if role == 0 else range(4,8)):
            r.append([exec_lo(), salu("s_add_u32", "m0", sRING, ((ks % 3)*8 + p)*PST), smov(sT2, (32*ks + 4*p)*896),
                      buf_dma(vOd, SWO, sT2, token=f"wo{ks}"), exec_all()])
        return r
    E(wo_dma(0)); E(wo_dma(1))
    if role == 1:
        for nt in range(NT): E(ds_read("ds_read_b128", MXT_P(nt), V(17), MX_OFF + nt*256))
        for nt in range(NT):
            x = MXT_P(nt)
            E(valu("v_add_f32", x[0], x[0], x[1])); E(valu("v_add_f32", x[2], x[2], x[3])); E(valu("v_add_f32", x[0], x[0], x[2]))
            E(valu("v_rcp_f32", V(84+nt), x[0], trans=True))
        stage_write(lambda mt, k: Oacc(mt, k), [0,1,2,3,4], OS0, lambda k: V(84+k))
    bar()
    stamp("ostage")
    vq0 = V(9); vwa = V(10)
    E(valu("v_xor_b32", vT[0], vG, vJ))
    E(valu("v_lshlrev_b32", vT[0], 4, vT[0]))
    E(valu("v_lshl_add_u32", vq0, vJ, 9, vT[0]))
    E(valu("v_lshrrev_b32", vT[0], 2, vJ))
    E(valu("v_and_b32", vT[1], 3, vJ))
    E(valu("v_mul_u32_u24", vT[0], 224, vT[0]))
    E(valu("v_lshl_add_u32", vT[0], vT[1], 3, vT[0]))
    E(valu("v_mul_u32_u24", vT[1], 2*PST, vG))
    E(valu("v_add_u32", vT[0], vT[0], vT[1]))
    E(valu("v_add_u32", vwa, sRING, vT[0]))
    oa = [V(11+i) for i in range(4)]
    for e in range(4): E(valu("v_xor_b32", oa[e], e*64, vq0))
    def YA(mt, k): return A((mt*3+k)*4, 4)
    def WF(par, mt): return V(16 + par*28 + mt*4, 4)
    def OF(par, k): return V(72 + par*12 + k*4, 4)
    def frag_reads(ks):
        r = []
        par = ks & 1
        for k, nt in enumerate(nts):
            r.append(ds_read("ds_read_b128", OF(par, k), oa[ks & 3], OS0 + nt*8192 + (ks >> 2)*256))
        for mt in range(7):
            for h in range(2):
                r.append(ds_read("ds_read_b64_tr_b16", WF(par, mt).sub(2*h, 2), vwa, ((ks % 3)*8 + h)*PST + mt*32))
        return r
    for ks in range(8):
        E(raw("s_nop 0", need=[f"wo{ks}"]))
        bar()
        par = ks & 1
        E(frag_reads(ks))
        mf = []
        for mt in range(7):
            for k in range(len(nts)):
                c = YA(mt, k) if ks > 0 else 0
                mf.append(mfma16(YA(mt, k), WF(par, mt), OF(par, k), c))
        st = []
        if ks + 2 < 8:
            st.append([[x, 1+3*i, 2+3*i] for i, x in enumerate(wo_dma(ks+2))])
        E(schedule(mf, st))
    stamp("omfma")
    bar()
    RS = 464
    E(smul(sRING, sW8, 7680)); E(sadd(sRING, sRING, YS0))
    vyw = V(8)
    E(valu("v_mul_u32_u24", vT[0], RS, vJ))
    E(valu("v_lshl_add_u32", vT[0], vG, 4, vT[0]))
    E(valu("v_add_u32", vyw, sRING, vT[0]))
    for it_ in range(7):
        E(valu("v_add_u32", vT[0], it_*64, vLane))
        E(valu("v_mul_u32_u24", vT[1], 2341, vT[0]))
        E(valu("v_lshrrev_b32", vT[1], 16, vT[1]))
        E(valu("v_mul_u32_u24", vT[2], 28, vT[1]))
        E(valu("v_sub_u32", vT[0], vT[0], vT[2]))
        E(valu("v_mul_u32_u24", vT[2], RS, vT[1]))
        E(valu("v_lshl_add_u32", vT[2], vT[0], 4, vT[2]))
        E(valu("v_add_u32", V(72+it_), sRING, vT[2]))
        E(valu("v_mul_u32_u24", vT[3], 1792, vT[1]))
        E(valu("v_lshl_add_u32", V(80+it_), vT[0], 4, vT[3]))
    E(smul(sT1, sW, 448))
    for k, nt in enumerate(nts):
        for mt in range(7):
            q = V(16 + mt*4, 4)
            for r in range(4): E(I(f"v_accvgpr_read_b32 {q[r]}, {YA(mt,k)[r]}", 'valu', [YA(mt,k)[r]], [q[r]]))
            E(ds_write("ds_write_b128", vyw, q, mt*64))
        for it_ in range(7):
            E(ds_read("ds_read_b128", V(44 + it_*4, 4), V(72+it_)))
        E(sadd(sT2, sT1, nt*16*1792))
        for it_ in range(7):
            E(buf_store("buffer_store_dwordx4", V(44 + it_*4, 4), V(80+it_), SY, sT2))
    E(waitall())
    stamp("end")
    stamp_dump()
    E(raw("s_endpgm", kind='branch'))

def finalize(T):
    insert_waits(T); insert_nops(T)
    return emit(fold(T))

C = Ctx(); setup_common(); role_S(); TS = C.T; stS = C.stamps
C = Ctx(); setup_common(); npre = len(C.T); role_P(); TP = C.T; stP = C.stamps
bodyS = finalize(TS)
insert_waits(TP); insert_nops(TP)
bodyP = emit(fold(TP[npre:]))
rare = {}
for name, R in RARE:
    if name in rare: assert rare[name] == R, name
    rare[name] = R

out = []
out.append("; @launch kernel=gqa_attn_kernel grid=(256,1,1) block=(512,1,1) lds=163840")
out.append("; @launch kernel=gqa_reduce_kernel grid=(504,1,1) block=(256,1,1) lds=0")
out.append('.amdgcn_target "amdgcn-amd-amdhsa--gfx950"')
out.append(".text")
out.append(".globl gqa_attn_kernel\n.p2align 8\n.type gqa_attn_kernel,@function\ngqa_attn_kernel:")
out += bodyS
out += bodyP
out.append("L_END:\n  s_endpgm")
for name, R in rare.items(): out += R
red = """
.globl gqa_reduce_kernel
.p2align 8
.type gqa_reduce_kernel,@function
gqa_reduce_kernel:
  s_cmp_ge_u32 s2, 504
  s_cbranch_scc1 L_REND
  s_load_dwordx2 s[4:5], s[0:1], 40
  s_load_dwordx2 s[6:7], s[0:1], 56
  s_lshl_b32 s3, s2, 8
  v_add_u32 v1, s3, v0
  v_lshlrev_b32 v2, 4, v1
  v_lshlrev_b32 v3, 3, v1
  s_waitcnt lgkmcnt(0)
  s_mov_b32 s8, s6
  s_mov_b32 s9, s7
  s_mov_b32 s10, 33030144
  s_mov_b32 s11, 0x00020000
  s_mov_b32 s12, s4
  s_mov_b32 s13, s5
  s_mov_b32 s14, 1032192
  s_mov_b32 s15, 0x00020000
  s_mov_b32 s16, 0
"""
for h in range(16):
    red += f"  buffer_load_dwordx4 v[{8+4*h}:{11+4*h}], v2, s[8:11], s16 offen\n"
    if h < 15: red += "  s_add_u32 s16, s16, 2064384\n"
def addq(d, a):
    return "".join(f"  v_add_f32 v{8+4*d+r}, v{8+4*d+r}, v{8+4*a+r}\n" for r in range(4))
red += "  s_waitcnt vmcnt(8)\n"
for h in range(0, 8, 2): red += addq(h, h+1)
red += addq(0, 2) + addq(4, 6) + addq(0, 4)
red += "  s_waitcnt vmcnt(0)\n"
for h in range(8, 16, 2): red += addq(h, h+1)
red += addq(8, 10) + addq(12, 14) + addq(8, 12) + addq(0, 8)
red += """  v_cvt_pk_bf16_f32 v8, v8, v9
  v_cvt_pk_bf16_f32 v9, v10, v11
  buffer_store_dwordx2 v[8:9], v3, s[12:15], 0 offen
L_REND:
  s_endpgm
"""
out.append(red)
out.append(""".section .rodata,"a"
.p2align 6
.amdhsa_kernel gqa_attn_kernel
  .amdhsa_next_free_vgpr 256
  .amdhsa_next_free_sgpr 100
  .amdhsa_accum_offset 96
  .amdhsa_group_segment_fixed_size 0
  .amdhsa_kernarg_size 64
  .amdhsa_user_sgpr_count 2
  .amdhsa_user_sgpr_kernarg_segment_ptr 1
  .amdhsa_system_sgpr_workgroup_id_x 1
.end_amdhsa_kernel
.p2align 6
.amdhsa_kernel gqa_reduce_kernel
  .amdhsa_next_free_vgpr 72
  .amdhsa_next_free_sgpr 32
  .amdhsa_accum_offset 72
  .amdhsa_group_segment_fixed_size 0
  .amdhsa_kernarg_size 64
  .amdhsa_user_sgpr_count 2
  .amdhsa_user_sgpr_kernarg_segment_ptr 1
  .amdhsa_system_sgpr_workgroup_id_x 1
.end_amdhsa_kernel
""")
open(OUT, "w").write("\n".join(out) + "\n")
nbS = sum(1 for l in bodyS if "s_barrier" in l); nbP = sum(1 for l in bodyP if "s_barrier" in l)
print("instr S:", len(bodyS), "P:", len(bodyP), "barriers(static) S/P:", nbS, nbP, "stampsS:", ",".join(stS), "stampsP:", ",".join(stP))
```
